```python
import torch

def _softmax(x, axis=-1):
    return torch.softmax(x, dim=axis)
def _gelu(x):
    return torch.nn.functional.gelu(x, approximate="tanh")
def _silu(x):
    return torch.nn.functional.silu(x)
def _sigmoid(x):
    return torch.sigmoid(x)
def _layernorm(x, axis=-1, eps=1e-5):
    m = x.mean(dim=axis, keepdim=True)
    v = x.var(dim=axis, keepdim=True, unbiased=False)
    return (x - m) / torch.sqrt(v + eps)
def _scatter_add(tgt, idx, src, axis=0):
    return tgt.clone().index_add_(axis, idx, src)
def _segment_sum(src, seg, n):
    out = torch.zeros((n,) + src.shape[1:], dtype=src.dtype)
    return out.index_add_(0, seg, src)
def _pad(x, pw):
    flat = tuple(v for pair in reversed(pw) for v in pair)
    return torch.nn.functional.pad(x, flat)

kernel_name = 'parallel_sum__linear_kernel_hedgehog__glu_gated_geglu__prompt'

def setup_inputs():

    _w = (lambda a: (lambda t: t.to(torch.bfloat16) if t.is_floating_point() else t)(torch.as_tensor(a)))
    def _A_setup():
        B, S, D, H = 1, 2048, 448, 16
        Dh = D // H
        return {
            "x": _w((lambda *s: torch.randn(*s, dtype=torch.bfloat16) * 0.05)(B, S, D)),
            "wqkv": _w((lambda *s: torch.randn(*s, dtype=torch.bfloat16) * 0.2)(D, 3 * D)),
            "w_phi": _w((lambda *s: torch.randn(*s, dtype=torch.bfloat16) * 0.2)(H, Dh, Dh) * (Dh ** -0.5)),
            "wo": _w((lambda *s: torch.randn(*s, dtype=torch.bfloat16) * 0.05)(D, D)),
        }
    _A_in = _A_setup()

    def _B_setup():
        B, S, Dm, Df = 1, 2048, 448, 1792
        return {
            "x": _w((lambda *s: torch.randn(*s, dtype=torch.bfloat16) * 0.05)(B, S, Dm)),
            "w_gate": _w((lambda *s: torch.randn(*s, dtype=torch.bfloat16) * 0.4)(Dm, Df) * (Dm ** -0.5)),
            "w_up": _w((lambda *s: torch.randn(*s, dtype=torch.bfloat16) * 0.4)(Dm, Df) * (Dm ** -0.5)),
            "w_down": _w((lambda *s: torch.randn(*s, dtype=torch.bfloat16) * 0.4)(Df, Dm) * (Df ** -0.5)),
        }
    _B_in = _B_setup()

    return {
        "A_x": _A_in["x"],
        "A_wqkv": _A_in["wqkv"],
        "A_w_phi": _A_in["w_phi"],
        "A_wo": _A_in["wo"],
        "B_x": _B_in["x"],
        "B_w_gate": _B_in["w_gate"],
        "B_w_up": _B_in["w_up"],
        "B_w_down": _B_in["w_down"],
    }

def reference(A_x, A_wqkv, A_w_phi, A_wo, B_x, B_w_gate, B_w_up, B_w_down):
    def _A_ref(x, wqkv, w_phi, wo):
        B, S, D = x.shape
        H = 16; Dh = D // H
        qkv = (lambda x, *d: x.permute(*d))((x @ wqkv).reshape(B, S, 3, H, Dh), 2, 0, 3, 1, 4)
        q, k, v = qkv[0], qkv[1], qkv[2]
        pq = torch.einsum("bhsd,hdf->bhsf", q, w_phi)
        pk = torch.einsum("bhsd,hdf->bhsf", k, w_phi)
        phi_q = torch.concatenate([_softmax(pq, axis=-1), _softmax(-pq, axis=-1)], axis=-1)
        phi_k = torch.concatenate([_softmax(pk, axis=-1), _softmax(-pk, axis=-1)], axis=-1)
        kv = torch.einsum("bhsf,bhsd->bhfd", phi_k, v)
        z  = torch.einsum("bhsf->bhf", phi_k)
        num = torch.einsum("bhqf,bhfd->bhqd", phi_q, kv)
        den = torch.einsum("bhqf,bhf->bhq", phi_q, z)[..., None] + 1e-6
        o = num / den
        return (lambda x, *d: x.permute(*d))(o, 0, 2, 1, 3).reshape(B, S, D) @ wo

    def _B_ref(x, w_gate, w_up, w_down):
        g = torch.einsum("bsd,df->bsf", x, w_gate)
        u = torch.einsum("bsd,df->bsf", x, w_up)
        h = _gelu(g) * u
        return torch.einsum("bsf,fd->bsd", h, w_down)

    x = A_x
    xn = _layernorm(x, axis=-1)
    return x + _A_ref(xn, A_wqkv, A_w_phi, A_wo) + _B_ref(xn, B_w_gate, B_w_up, B_w_down)
```

```python
import re, copy

_VR = re.compile(r'(?<![\w.])(-?)\|?v(?:\[(\d+):(\d+)\]|(\d+))')
_SR = re.compile(r'(?<![\w.])s(?:\[(\d+):(\d+)\]|(\d+))')

def vregs(tok):
    out = []
    for m in _VR.finditer(tok):
        if m.group(2) is not None: out += list(range(int(m.group(2)), int(m.group(3)) + 1))
        else: out.append(int(m.group(4)))
    return out
def sregs(tok):
    out = []
    for m in _SR.finditer(tok):
        if m.group(1) is not None: out += [f"s{i}" for i in range(int(m.group(1)), int(m.group(2)) + 1)]
        else: out.append(f"s{m.group(3)}")
    if re.search(r'\bvcc\b', tok): out.append("vcc")
    if re.search(r'\bm0\b', tok): out.append("m0")
    if re.search(r'\bexec\b', tok): out.append("exec")
    return out

TRANS = ("v_exp_f32", "v_log_f32", "v_rcp_f32", "v_rsq_f32", "v_sqrt_f32", "v_sin_f32", "v_cos_f32", "v_rcp_iflag_f32")

class Ins:
    def __init__(s, text):
        s.text = text
        t = text.split(";")[0].strip()
        p = t.split(None, 1)
        s.op = p[0]
        rest = p[1] if len(p) > 1 else ""
        ops, depth, cur = [], 0, ""
        for ch in rest:
            if ch == "[": depth += 1
            if ch == "]": depth -= 1
            if ch == "," and depth == 0: ops.append(cur.strip()); cur = ""
            else: cur += ch
        if cur.strip(): ops.append(cur.strip())
        mods = ""
        if ops:
            q = ops[-1].split(None, 1)
            ops[-1] = q[0]
            mods = q[1] if len(q) > 1 else ""
        s.ops, s.mods = ops, mods
        op = s.op
        s.vd, s.vs, s.sd, s.ss = [], [], [], []
        s.kind = "other"; s.srcc = []; s.stdata = []
        s.dpp = ("_dpp" in op) or ("row_" in mods) or ("quad_perm" in mods)
        if op.startswith("v_mfma"):
            s.kind = "mfma"; s.vd = vregs(ops[0]); s.vs = vregs(ops[1]) + vregs(ops[2]) + vregs(ops[3])
            s.ab = vregs(ops[1]) + vregs(ops[2]); s.srcc = vregs(ops[3])
            s.passes = 8 if "32x32x16" in op else 4
        elif op.startswith("v_"):
            s.kind = "valu"
            base = op.replace("_e32", "").replace("_e64", "").replace("_dpp", "").replace("_sdwa", "")
            s.base = base
            if base.startswith("v_cmp"):
                s.sd = sregs(ops[0]); rd = ops[1:]
            elif base in ("v_readfirstlane_b32", "v_readlane_b32"):
                s.sd = sregs(ops[0]); rd = ops[1:]
            elif base.startswith("v_permlane"):
                s.vd = vregs(ops[0]) + vregs(ops[1]); rd = ops
            elif base in ("v_add_co_u32", "v_sub_co_u32", "v_addc_co_u32"):
                s.vd = vregs(ops[0]); s.sd = sregs(ops[1]); rd = ops[2:]
            elif base == "v_nop":
                rd = []
            else:
                s.vd = vregs(ops[0]); rd = ops[1:]
                if base in ("v_fmac_f32", "v_dot2c_f32_bf16", "v_writelane_b32") or s.dpp: rd = ops
            for o in rd:
                s.vs += vregs(o); s.ss += sregs(o)
            s.trans = base in TRANS
            s.dot = base.startswith("v_dot")
        elif op.startswith("ds_"):
            if op.startswith("ds_read"):
                s.kind = "dsr"; s.vd = vregs(ops[0]); s.vs = vregs(ops[1])
            elif op.startswith("ds_bpermute") or op.startswith("ds_swizzle"):
                s.kind = "dsr"; s.vd = vregs(ops[0]); s.vs = sum((vregs(o) for o in ops[1:]), [])
            else:
                s.kind = "dsw"; s.vs = sum((vregs(o) for o in ops), [])
        elif op.startswith("buffer_load"):
            if re.search(r'\blds\b', mods):
                s.kind = "dma"; s.vs = vregs(ops[0]); s.ss = sum((sregs(o) for o in ops[1:]), []) + ["m0"]
            else:
                s.kind = "vld"; s.vd = vregs(ops[0]); s.vs = vregs(ops[1]); s.ss = sum((sregs(o) for o in ops[2:]), [])
        elif op.startswith("buffer_store"):
            s.kind = "vst"; s.vs = vregs(ops[0]) + vregs(ops[1]); s.ss = sum((sregs(o) for o in ops[2:]), [])
            if "x3" in op or "x4" in op: s.stdata = vregs(ops[0])
        elif op.startswith("global_load"):
            s.kind = "vld"; s.vd = vregs(ops[0]); s.vs = vregs(ops[1]); s.ss = sum((sregs(o) for o in ops[2:]), [])
        elif op.startswith("global_store"):
            s.kind = "vst"; s.vs = vregs(ops[0]) + vregs(ops[1]); s.ss = sum((sregs(o) for o in ops[2:]), [])
            if "x3" in op or "x4" in op: s.stdata = vregs(ops[1])
        elif op.startswith("s_"):
            s.kind = "salu"
            if op.startswith(("s_cmp", "s_cbranch", "s_branch", "s_waitcnt", "s_nop", "s_barrier", "s_endpgm", "s_sleep", "s_setprio", "s_bitcmp")):
                s.ss = sum((sregs(o) for o in ops), [])
            else:
                s.sd = sregs(ops[0]) if ops else []
                s.ss = sum((sregs(o) for o in ops[1:]), [])
                if "saveexec" in op: s.sd.append("exec")
        else:
            raise ValueError("unknown op " + text)

BIG = 1000
class Path:
    def __init__(s, out=None):
        s.out = out if out is not None else []
        s.pos = 0
        s.vw = {}; s.tw = {}; s.dw = {}; s.mw = {}; s.mc = {}; s.st = {}; s.sw = {}; s.m0 = -BIG; s.execw = -BIG
        s.vm = []
        s.lg = []
        s.nnop = 0; s.nwait = 0; s.count = {}
    def fork(s):
        n = copy.copy(s)
        for k in ("vw", "tw", "dw", "mw", "mc", "st", "sw", "count"): setattr(n, k, dict(getattr(s, k)))
        n.vm = [dict(e) for e in s.vm]; n.lg = [dict(e) for e in s.lg]
        return n
    def raw(s, text): s.out.append(text)
    def label(s, name): s.out.append(name + ":")
    def comment(s, t): s.out.append("; " + t)
    def _emit(s, text, states=1):
        s.out.append("  " + text); s.pos += states
    def _wait(s, vm=None, lg=None):
        parts = []
        if vm is not None and vm < len(s.vm):
            parts.append(f"vmcnt({min(vm, 63)})"); s.vm = s.vm[len(s.vm) - vm:] if vm else []
        if lg is not None and lg < len(s.lg):
            parts.append(f"lgkmcnt({min(lg, 15)})"); s.lg = s.lg[len(s.lg) - lg:] if lg else []
        if parts:
            s._emit("s_waitcnt " + " ".join(parts)); s.nwait += 1
    def wait_tok(s, *toks):
        vm = lg = None
        for q, name in ((s.vm, "vm"), (s.lg, "lg")):
            last = -1
            for i, e in enumerate(q):
                if e["tok"] in toks: last = i
            if last >= 0:
                if name == "vm": vm = len(q) - 1 - last
                else: lg = len(q) - 1 - last
        s._wait(vm, lg)
    def wait_all(s, vm=True, lg=True):
        s._wait(0 if vm else None, 0 if lg else None)
    def pending(s, tok):
        return any(e["tok"] == tok for e in s.vm + s.lg)
    def forget_smem(s):
        s._emit("s_waitcnt lgkmcnt(0)"); s.lg = []
    def __call__(s, text, tok=None):
        for line in text.split("\n"):
            line = line.strip()
            if line: s.ins(line, tok)
    def ins(s, text, tok=None):
        I = Ins(text)
        s.count[I.kind] = s.count.get(I.kind, 0) + 1
        touch = set(I.vd) | set(I.vs)
        vm = lg = None
        for i, e in enumerate(s.vm):
            if e["regs"] & touch: vm = len(s.vm) - 1 - i
        for i, e in enumerate(s.lg):
            if e["regs"] & touch: lg = len(s.lg) - 1 - i
        s._wait(vm, lg)
        need = 0
        def req(last, n):
            nonlocal need
            need = max(need, n - (s.pos - last))
        k = I.kind
        if k == "mfma":
            for r in I.vs:
                if r in s.vw: req(s.vw[r], 2)
                if r in s.dw: req(s.dw[r][0], 3)
            for r in I.ab:
                if r in s.mw: req(s.mw[r][0], s.mw[r][1] + 4)
            for r in set(I.srcc) | set(I.vd):
                if r in s.mw:
                    same = (s.mw[r][2] == tuple(I.srcc) and s.mw[r][1] == I.passes and tuple(I.vd) == tuple(I.srcc))
                    if not same: req(s.mw[r][0], s.mw[r][1] + 4)
            req(s.execw, 4)
        else:
            for r in touch:
                if r in s.mw: req(s.mw[r][0], s.mw[r][1] + 4)
            if k == "valu":
                for r in I.vd:
                    if r in s.mc: req(s.mc[r][0], s.mc[r][1] - 1)
                    if r in s.st: req(s.st[r], 2)
                for r in I.vs:
                    if r in s.tw and not I.trans: req(s.tw[r], 1)
                    if r in s.vw:
                        if I.dpp or I.base.startswith("v_permlane"): req(s.vw[r], 2)
                        if I.base in ("v_readfirstlane_b32", "v_readlane_b32"): req(s.vw[r], 1)
                for r in touch:
                    if r in s.dw:
                        if not (I.dot and s.dw[r][1] == I.base and r in I.vd and I.vs.count(r) == 1): req(s.dw[r][0], 3)
                for r in I.ss:
                    if r in s.sw: req(s.sw[r], 4 if I.base in ("v_readlane_b32", "v_writelane_b32") else 2)
                if I.dpp: req(s.execw, 5)
            if k in ("dsr", "vld"):
                for r in I.vd:
                    if r in s.st: req(s.st[r], 1)
            if k in ("dsr", "dsw", "vld", "vst", "dma"):
                for r in I.vs:
                    if r in s.tw: req(s.tw[r], 1)
                    if r in s.dw: req(s.dw[r][0], 3)
            if k in ("vld", "vst", "dma"):
                for r in I.ss:
                    if r in s.sw: req(s.sw[r], 5)
            if k == "dma": req(s.m0, 1)
            if k == "salu":
                for r in I.ss:
                    if r in s.sw: req(s.sw[r], 1)
        while need > 0:
            n = min(need, 16)
            s._emit(f"s_nop {n-1}", n); s.nnop += 1; need -= n
        states = 1
        if I.op == "s_nop": states = int(I.ops[0], 0) + 1
        s._emit(text, states)
        p = s.pos
        if k == "mfma":
            for r in I.vd:
                s.mw[r] = (p, I.passes, tuple(I.vd)); s.vw.pop(r, None); s.tw.pop(r, None)
            for r in I.srcc: s.mc[r] = (p, I.passes)
        elif k == "valu":
            for r in I.vd:
                s.vw[r] = p; s.mw.pop(r, None)
                if I.trans: s.tw[r] = p
                else: s.tw.pop(r, None)
                if I.dot: s.dw[r] = (p, I.base)
                else: s.dw.pop(r, None)
            for r in I.sd:
                s.sw[r] = p
                if r == "exec": s.execw = p
        elif k == "salu":
            for r in I.sd:
                s.sw.pop(r, None)
                if r == "m0": s.m0 = p
        if I.stdata:
            for r in I.stdata: s.st[r] = p
        if k in ("vld", "vst", "dma"):
            s.vm.append(dict(regs=set(I.vd), tok=tok))
        if k in ("dsr", "dsw"):
            s.lg.append(dict(regs=set(I.vd), tok=tok))
    def settle(s):
        worst = 0
        for d, n in ((s.vw, 2), (s.tw, 1), (s.st, 2), (s.sw, 5)):
            for r, p in d.items(): worst = max(worst, n - (s.pos - p))
        for r, e in s.dw.items(): worst = max(worst, 3 - (s.pos - e[0]))
        for r, e in s.mw.items(): worst = max(worst, e[1] + 4 - (s.pos - e[0]))
        for r, e in s.mc.items(): worst = max(worst, e[1] - 1 - (s.pos - e[0]))
        worst = max(worst, 1 - (s.pos - s.m0), 5 - (s.pos - s.execw))
        if worst > 0: s._emit(f"s_nop {worst-1}", worst)

def join(a, b):
    a.settle_called = True
    n = a.fork()
    for name in ("vm", "lg"):
        qa, qb = getattr(a, name), getattr(b, name)
        L = max(len(qa), len(qb))
        q = [dict(regs=set(), tok=None) for _ in range(L)]
        toks = {}
        for src in (qa, qb):
            for i, e in enumerate(src):
                d = len(src) - 1 - i
                q[L - 1 - d]["regs"] |= e["regs"]
                if e["tok"] is not None: toks[e["tok"]] = min(toks.get(e["tok"], BIG), d)
        for t, d in toks.items():
            e = q[L - 1 - d]
            if e["tok"] is None: e["tok"] = t
            elif isinstance(e["tok"], MultiTok): e["tok"].add(t)
            else: e["tok"] = MultiTok([e["tok"], t])
        setattr(n, name, q)
    return n

class MultiTok(set):
    def __eq__(s, o): return o in s
    def __hash__(s): return id(s)
```

```python
import sys, math
from asmlib import Path
NAME = "parallel_sum__linear_kernel_hedgehog__glu_gated_geglu__prompt"

WS_FK = 0x1000; WS_FF = 0x2000; WS_FH = 0x4000; WS_FX = 0x20000
WS_KVP = 0x100000; WS_KVF = 0x300000; WS_XCH = 0x400000; WS_HF = 0x800000; WS_ST = 0x8000000
HF_G = 144 * 1024
SLOT = 8192

SX, SQKV, SPHI, SWO, SGU, SWD, SOUT, SWS = 4, 8, 12, 16, 20, 24, 28, 32
def srd(b): return f"s[{b}:{b+3}]"
sW, sRG, sWK, sHALF, sR, sJJ, sHK, sTAG, sEP, sMASK = 36, 37, 38, 39, 40, 41, 42, 43, 44, 45
sOFF, sT0, sT1, sL2E, sHFB, sUB, sC2, sTO = 46, 47, 48, 49, 50, 51, 52, 53
sP0 = 92
sST = 60
sT2, sT3, sT4 = 54, 55, 56
sEX = 58

vL16, vKVD, vUD, vW2D, vWOD, vA0, vA1, vC1, vFL, vPOLL = 1, 2, 3, 4, 5, 6, 7, 8, 9, 10
vT0, vT1, vT2, vT3, vLANE = 11, 12, 13, 14, 15
XF = 16
ACC0, ACC1 = 128, 160
AF = 192; NAF = 6; DEPTH = 4
TMP = 216

def v(a, n=1): return f"v{a}" if n == 1 else f"v[{a}:{a+n-1}]"
def f2u(x):
    import struct
    return struct.unpack("<I", struct.pack("<f", x))[0]
LOG2E = 1.4426950408889634
C1 = -2.0 * math.sqrt(2.0 / math.pi) * LOG2E
C2 = C1 * 0.044715

class Cfg:
    stamps = False
    def __init__(s, **kw): s.__dict__.update(kw)

class AddrReg:
    def __init__(s, reg, cur=0): s.reg, s.cur = reg, cur
    def off(s, P, absoff, span=0):
        if not (0 <= absoff - s.cur and absoff + span - s.cur <= 65535):
            new = (absoff // 32768) * 32768
            d = new - s.cur
            P(f"v_add_u32 v{s.reg}, {d & 0xffffffff}, v{s.reg}")
            s.cur = new
        return absoff - s.cur

class Gen:
    def __init__(g, cfg):
        g.cfg = cfg; g.out = []; g.slow = []; g.nlab = 0
    def stamp(g, P, i, real=False):
        if g.cfg.stamps:
            P.raw(f"  {'s_memrealtime' if real else 's_memtime'} s[{sST+2*i}:{sST+2*i+1}]"); P.pos += 1
    def lab(g, s):
        g.nlab += 1; return f"L_{s}_{g.nlab}"

    def poll_issue(g, P, areg, soff, dst=vPOLL):
        P(f"buffer_load_dword v{dst}, v{areg}, {srd(SWS)}, {soff} offen sc1", tok="poll")
    def poll_check(g, P, areg, soff, dst=vPOLL):
        ok, slow = g.lab("ok"), g.lab("slow")
        P(f"v_cmp_ne_u32 vcc, s{sTAG}, v{dst}")
        P.raw("  s_nop 4"); P.pos += 5
        P(f"s_cbranch_vccnz {slow}")
        P.label(ok)
        lp = g.lab("lp")
        g.slow += [f"{slow}:", f"  s_mov_b32 s{sTO}, 0", f"{lp}:", "  s_sleep 1",
                   f"  buffer_load_dword v{dst}, v{areg}, {srd(SWS)}, {soff} offen sc1",
                   f"  s_add_u32 s{sTO}, s{sTO}, 1", "  s_waitcnt vmcnt(0)",
                   f"  v_cmp_ne_u32 vcc, s{sTAG}, v{dst}", "  s_nop 4",
                   f"  s_cbranch_vccz {ok}", f"  s_cmp_lt_u32 s{sTO}, 20000", f"  s_cbranch_scc1 {lp}", f"  s_branch {ok}"]
    def flag_store(g, P, soff, treg=vT0, zreg=vT1):
        P(f"v_mov_b32 v{treg}, s{sTAG}")
        P(f"v_mov_b32 v{zreg}, 0")
        P(f"s_mov_b64 exec, 1")
        P(f"buffer_store_dword v{treg}, v{zreg}, {srd(SWS)}, {soff} offen sc1", tok="flag")
        P(f"s_mov_b64 exec, -1")

    def dma(g, key, slot):
        kind = key[0]
        m0 = f"s_add_u32 m0, s{sWK}, {slot*SLOT}"
        if kind == "kv":
            return [m0, f"s_mov_b32 s{sOFF}, {key[1]*64*2688}", (f"buffer_load_dwordx4 v{vKVD}, {srd(SQKV)}, s{sOFF} offen lds", key)]
        if kind == "u":
            if g.role == "F":
                return [m0, f"s_mov_b32 s{sOFF}, {key[2]*32*3584 + key[1]*128}", (f"buffer_load_dwordx4 v{vUD}, {srd(SGU)}, s{sOFF} offen lds", key)]
            return [m0, f"s_mov_b32 s{sOFF}, {key[2]*32*2688 + key[1]*224}", (f"buffer_load_dwordx4 v{vUD}, {srd(SQKV)}, s{sOFF} offen lds", key)]
        if kind == "misc":
            return [m0, f"s_add_u32 s{sOFF}, s{sUB}, {key[1]*SLOT}", (f"buffer_load_dwordx4 v{vL16}, {srd(SPHI)}, s{sOFF} offen lds", key)]
        if kind == "w2":
            G = key[1]
            if G < 14:
                u, i = divmod(G, 7)
                pre = [f"s_mul_i32 s{sOFF}, s{sP0+i}, {128*896}"]
                if u: pre.append(f"s_add_u32 s{sOFF}, s{sOFF}, {64*896}")
                return [m0] + pre + [(f"buffer_load_dwordx4 v{vW2D}, {srd(SWD)}, s{sOFF} offen lds", key)]
            return [m0, f"s_mov_b32 s{sOFF}, {(G-14)*56*896}", (f"buffer_load_dwordx4 v{vWOD}, {srd(SWO)}, s{sOFF} offen lds", key)]
        if kind == "kvf":
            return [m0, f"s_add_u32 s{sOFF}, s{sT4}, {key[1]*SLOT}", (f"buffer_load_dwordx4 v{vL16}, {srd(SWS)}, s{sOFF} offen sc1 lds", key)]
        raise ValueError(key)
    def emit_list(g, P, L):
        for it in L:
            if callable(it): it(P)
            elif isinstance(it, tuple): P(it[0], tok=it[1])
            else: P(it)

    def prologue(g):
        P = Path(g.out)
        g.stamp(P, 0, real=True); g.stamp(P, 1)
        P("s_cmp_ge_u32 s2, 256\ns_cbranch_scc1 L_end")
        P.raw("  s_load_dwordx16 s[72:87], s[0:1], 0")
        P.raw("  s_load_dwordx2 s[88:89], s[0:1], 64")
        P.raw("  s_load_dwordx2 s[90:91], s[0:1], 80")
        P.raw("  s_getpc_b64 s[56:57]")
        P(f"v_and_b32 v{vLANE}, 63, v0")
        P(f"v_lshrrev_b32 v{vT0}, 6, v0")
        P(f"s_lshr_b32 s{sT0}, s2, 3")
        P(f"v_readfirstlane_b32 s{sW}, v{vT0}")
        if g.cfg.codepf:
            P(f"v_and_b32 v{vT1}, 15, v0")
            P(f"s_lshl_b32 s{sT1}, s{sT0}, 4")
            P(f"v_add_u32 v{vT1}, s{sT1}, v{vT1}")
            P(f"v_lshlrev_b32 v{vT1}, 7, v{vT1}")
            P(f"v_min_u32 v{vT1}, L_code_end-{NAME}_kernel-64, v{vT1}")
            P(f"s_cmp_lg_u32 s{sW}, 0\ns_cbranch_scc1 L_nopf")
            P.raw(f"  global_load_dword v{vT2}, v{vT1}, s[56:57]")
            P.label("L_nopf")
            P.vm.append(dict(regs={vT2}, tok=None))
        P(f"s_and_b32 s{sHALF}, s2, 1")
        P(f"s_bfe_u32 s{sR}, s2, 0x20001")
        P(f"s_lshl_b32 s{sR}, s{sR}, 2")
        P(f"s_and_b32 s{sT1}, s{sT0}, 3")
        P(f"s_add_u32 s{sR}, s{sR}, s{sT1}")
        P(f"s_lshr_b32 s{sJJ}, s{sT0}, 2")
        P(f"s_sub_u32 s{sT1}, 6, s{sHALF}")
        P(f"s_cmp_ge_u32 s{sJJ}, s{sT1}")
        P(f"s_addc_u32 s{sHK}, s{sJJ}, 0")
        P(f"s_cmp_eq_u32 s{sJJ}, 7")
        P(f"s_cselect_b32 s{sHK}, s{sT1}, s{sHK}")
        P(f"s_lshl_b32 s{sT1}, s{sHALF}, 3")
        P(f"s_add_u32 s{sHK}, s{sHK}, s{sT1}")
        P(f"s_and_b32 s{sRG}, s{sW}, 3")
        P(f"s_lshl_b32 s{sWK}, s{sW}, 10")
        P(f"s_mov_b32 s{sMASK}, 0xffff0000")
        P(f"v_lshlrev_b32 v{vL16}, 4, v{vLANE}")
        vRow8, vP, vXA = TMP, TMP + 1, TMP + 2
        P(f"v_lshrrev_b32 v{vRow8}, 3, v{vLANE}")
        P(f"v_and_b32 v{vP}, 7, v{vLANE}")
        P(f"s_lshl_b32 s{sT1}, s{sW}, 3")
        P(f"v_add_u32 v{vT0}, s{sT1}, v{vRow8}")
        P(f"v_mul_u32_u24 v{vXA}, 896, v{vT0}")
        P(f"v_lshl_add_u32 v{vXA}, v{vP}, 4, v{vXA}")
        P(f"s_mul_i32 s{sT2}, s{sR}, {128*896}")
        P(f"s_add_u32 s{sT3}, s{sT2}, {64*896}")
        P.raw("  s_waitcnt lgkmcnt(0)"); P.pos += 1
        def mk(b, lo, n):
            P(f"s_mov_b32 s{b}, s{lo}\ns_mov_b32 s{b+1}, s{lo+1}\ns_mov_b32 s{b+2}, {n}\ns_mov_b32 s{b+3}, 0x20000")
        mk(SX, 72, 2048 * 896)
        RAW = ACC0
        for a in range(2):
            for i in range(7):
                P(f"buffer_load_dwordx4 {v(RAW+28*a+4*i,4)}, v{vXA}, {srd(SX)}, s{sT2+a} offen offset:{128*i}")
        P.raw(f"  s_load_dword s{sEP}, s[90:91], 0")
        mk(SQKV, 74, 448 * 2688)
        P(f"s_mul_i32 s{sT1}, s{sHK}, 56")
        P(f"s_and_b32 s{sT2}, s{sT1}, 0xfffffff0")
        P(f"s_add_u32 s{sT2}, s{sT2}, 896")
        vB = TMP + 3
        P(f"v_lshrrev_b32 v{vB}, 2, v{vLANE}")
        P(f"v_lshrrev_b32 v{vT1}, 4, v{vLANE}")
        P(f"v_xor_b32 v{vB}, v{vB}, v{vT1}")
        P(f"v_and_b32 v{vB}, 1, v{vB}")
        P(f"v_and_b32 v{vT1}, 3, v{vLANE}")
        P(f"v_lshlrev_b32 v{vT1}, 4, v{vT1}")
        P(f"v_mul_u32_u24 v{vKVD}, 2688, v{vT0}")
        P(f"v_mul_u32_u24 v{vT3}, 896, v{vB}")
        P(f"v_add3_u32 v{vKVD}, v{vKVD}, v{vT3}, v{vT1}")
        P(f"v_add_u32 v{vKVD}, s{sT2}, v{vKVD}")
        g.role = "F"
        for k in range(6): g.emit_list(P, g.dma(("kv", k), 14 + k))
        mk(SPHI, 76, 16 * 1568); mk(SWO, 78, 448 * 896); mk(SWD, 86, 1792 * 896); mk(SOUT, 88, 2048 * 896); mk(SWS, 90, 0x10000000)
        P(f"s_bitcmp1_b32 s{sW}, 0")
        P(f"s_cselect_b32 s{SGU}, s84, s82\ns_cselect_b32 s{SGU+1}, s85, s83\ns_mov_b32 s{SGU+2}, {448*3584}\ns_mov_b32 s{SGU+3}, 0x20000")
        P(f"v_lshl_add_u32 v{vT1}, v{vB}, 6, v{vT1}")
        P(f"s_lshl_b32 s{sT2}, s{sJJ}, 7")
        P(f"v_add_u32 v{vT1}, s{sT2}, v{vT1}")
        P(f"v_mul_u32_u24 v{vW2D}, 896, v{vT0}")
        P(f"v_add_u32 v{vW2D}, v{vW2D}, v{vT1}")
        P(f"v_and_b32 v{vT3}, 31, v{vT0}")
        P(f"v_subrev_u32 v{vWOD}, 2, v{vT3}")
        P(f"v_cmp_lt_u32 vcc, 27, v{vT3}")
        P(f"v_cndmask_b32 v{vT3}, v{vT3}, v{vWOD}, vcc")
        P(f"v_min_u32 v{vT3}, 27, v{vT3}")
        P(f"s_lshr_b32 s{sT2}, s{sW}, 2\ns_mul_i32 s{sT2}, s{sT2}, 28\ns_mul_i32 s{sT3}, s{sHALF}, 224\ns_add_u32 s{sT2}, s{sT2}, s{sT3}")
        P(f"v_add_u32 v{vT3}, s{sT2}, v{vT3}")
        P(f"v_mul_u32_u24 v{vWOD}, 896, v{vT3}")
        P(f"v_add_u32 v{vWOD}, v{vWOD}, v{vT1}")
        vWA = TMP + 4
        P(f"v_and_b32 v{vT3}, 31, v{vT0}")
        P(f"v_xor_b32 v{vT3}, v{vT3}, v{vP}")
        P(f"v_lshlrev_b32 v{vWA}, 4, v{vT3}")
        P(f"v_lshrrev_b32 v{vT3}, 1, v{vP}")
        P(f"v_lshl_add_u32 v{vWA}, v{vT3}, 12, v{vWA}")
        P(f"v_and_b32 v{vT3}, 1, v{vP}")
        P(f"v_lshl_add_u32 v{vWA}, v{vT3}, 9, v{vWA}")
        P(f"s_lshr_b32 s{sT2}, s{sW}, 2\ns_lshl_b32 s{sT2}, s{sT2}, 10")
        P(f"v_add_u32 v{vWA}, s{sT2}, v{vWA}")
        P(f"v_add_u32 v{vWA+1}, 0x10000, v{vWA}")
        vXR = TMP + 8
        P(f"v_lshrrev_b32 v{vT1}, 5, v{vLANE}")
        P(f"s_lshl_b32 s{sT2}, s{sRG}, 10")
        for q in range(4):
            P(f"v_add_u32 v{vT3}, {2*q}, v{vT1}")
            P(f"v_xor_b32 v{vT3}, v{vT3}, v{vLANE}")
            P(f"v_lshlrev_b32 v{vT3}, 4, v{vT3}")
            P(f"v_add_u32 v{vXR+q}, s{sT2}, v{vT3}")
        P(f"s_mov_b32 s{sL2E}, {hex(f2u(LOG2E))}")
        P(f"s_mov_b32 s{sC2}, {hex(f2u(C2))}")
        P(f"v_mov_b32 v{vC1}, {hex(f2u(C1))}")
        P(f"s_lshl_b32 s{sT2}, s{sR}, 2\ns_add_u32 s{sT2}, s{sT2}, s{sRG}\ns_mul_i32 s{sHFB}, s{sT2}, {HF_G}\ns_add_u32 s{sHFB}, s{sHFB}, {WS_HF}")
        P.raw("  s_waitcnt lgkmcnt(0)"); P.pos += 1
        P(f"s_mul_i32 s{sTAG}, s{sEP}, 0x9E3779B1\ns_add_u32 s{sTAG}, s{sTAG}, 0x7F4A7C15")
        g.stamp(P, 2)
        vS, vONE, vRS, vU = TMP + 12, TMP + 16, TMP + 18, TMP + 20
        P(f"v_mov_b32 v{vONE}, 0x3f803f80")
        for a in range(2):
            R = RAW + 28 * a
            for q in range(4): P(f"v_mov_b32 v{vS+q}, 0")
            for i in range(28):
                P(f"v_dot2c_f32_bf16 v{vS+(i&1)}, v{R+i}, v{vONE}")
                P(f"v_dot2c_f32_bf16 v{vS+2+(i&1)}, v{R+i}, v{R+i}")
            P(f"v_add_f32 v{vS}, v{vS}, v{vS+1}")
            P(f"v_add_f32 v{vS+2}, v{vS+2}, v{vS+3}")
            for m in ("quad_perm:[1,0,3,2]", "quad_perm:[2,3,0,1]", "row_half_mirror"):
                P(f"v_add_f32_dpp v{vS}, v{vS}, v{vS} {m} row_mask:0xf bank_mask:0xf")
                P(f"v_add_f32_dpp v{vS+2}, v{vS+2}, v{vS+2} {m} row_mask:0xf bank_mask:0xf")
            P(f"v_mul_f32 v{vS}, {hex(f2u(1/448))}, v{vS}")
            P(f"v_mul_f32 v{vS+1}, v{vS}, v{vS}")
            P(f"v_fma_f32 v{vS+2}, v{vS+2}, s{sT2}, -v{vS+1}" if False else f"v_mul_f32 v{vS+2}, {hex(f2u(1/448))}, v{vS+2}")
            P(f"v_sub_f32 v{vS+2}, v{vS+2}, v{vS+1}")
            P(f"v_max_f32 v{vS+2}, 0, v{vS+2}")
            P(f"v_add_f32 v{vS+2}, {hex(f2u(1e-5))}, v{vS+2}")
            P(f"v_rsq_f32 v{vRS}, v{vS+2}")
            P(f"v_mul_f32 v{vRS+1}, v{vS}, v{vRS}")
            P(f"v_sub_f32 v{vRS+1}, 0, v{vRS+1}")
            for i in range(7):
                for q in range(4):
                    r = R + 4 * i + q; t = vU + 2 * q
                    P(f"v_lshlrev_b32 v{t}, 16, v{r}")
                    P(f"v_and_b32 v{t+1}, s{sMASK}, v{r}")
                for q in range(4):
                    t = vU + 2 * q
                    P(f"v_pk_fma_f32 {v(t,2)}, {v(t,2)}, {v(vRS,2)}, {v(vRS,2)} op_sel:[0,0,1] op_sel_hi:[1,0,1]")
                for q in range(4):
                    r = R + 4 * i + q; t = vU + 2 * q
                    P(f"v_cvt_pk_bf16_f32 v{r}, v{t}, v{t+1}")
                off = i * 16384 + a * 2048
                P(f"ds_write_b128 v{vWA + (off >> 16)}, {v(R+4*i,4)} offset:{off & 0xffff}")
            g.stamp(P, 3) if a == 0 else None
        g.vXR = vXR
        P(f"s_cmp_eq_u32 s{sJJ}, 7\ns_cbranch_scc1 L_Q")
        P(f"s_cmp_ge_u32 s{sW}, 4\ns_cbranch_scc1 L_F1")
        return P

    def lane_parts(g, P, base):
        P(f"v_bfe_u32 v{base}, v{vLANE}, 4, 1")
        P(f"v_and_b32 v{base+1}, 3, v{vLANE}")
        P(f"v_bfe_u32 v{base+2}, v{vLANE}, 2, 2")
        P(f"v_lshrrev_b32 v{base+3}, 5, v{vLANE}")

    def addr_kv(g, P, nh, dst, LP):
        gi, c, rp, hh = LP, LP + 1, LP + 2, LP + 3
        P(f"s_mul_i32 s{sT2}, s{sHK}, 56\ns_and_b32 s{sT2}, s{sT2}, 15")
        P(f"v_lshl_add_u32 v{vT0}, v{gi}, 2, v{c}")
        P(f"v_lshl_add_u32 v{vT0}, v{vT0}, 3, s{sT2}")
        P(f"v_and_b32 v{vT0}, 63, v{vT0}")
        P(f"v_lshrrev_b32 v{vT1}, 1, v{rp}")
        if nh: P(f"v_xor_b32 v{vT1}, 1, v{vT1}")
        P(f"v_lshl_add_u32 v{vT0}, v{vT1}, 6, v{vT0}")
        P(f"v_lshl_add_u32 v{vT0}, v{rp}, 7, v{vT0}")
        P(f"v_lshl_add_u32 v{dst}, v{hh}, 10, v{vT0}")
    def addr_unit(g, nh, LP):
        gi, c, rp, hh = LP, LP + 1, LP + 2, LP + 3
        L = []
        for k, dst in enumerate((vA0, vA1)):
            if g.role == "F":
                t = 2 * nh + k
                L += [f"v_lshrrev_b32 v{vT0}, 1, v{rp}", f"v_lshl_add_u32 v{vT0}, v{gi}, 1, v{vT0}", f"v_xor_b32 v{vT0}, {t}, v{vT0}",
                      f"v_lshlrev_b32 v{vT0}, 5, v{vT0}", f"v_lshl_add_u32 v{vT0}, v{c}, 3, v{vT0}", f"v_lshl_add_u32 v{vT0}, v{rp}, 7, v{vT0}",
                      f"v_lshl_add_u32 v{vT0}, v{gi}, 10, v{vT0}", f"v_lshl_add_u32 v{dst}, v{hh}, 11, v{vT0}"]
            else:
                t = nh + 2 * k
                L += [f"v_lshl_add_u32 v{vT0}, v{gi}, 2, v{c}", f"v_lshlrev_b32 v{vT0}, 3, v{vT0}", f"v_add_u32 v{vT0}, {56*t}, v{vT0}",
                      f"v_lshlrev_b32 v{vT1}, 6, v{rp}", f"v_xor_b32 v{vT0}, v{vT0}, v{vT1}", f"v_lshl_add_u32 v{vT0}, v{rp}, 8, v{vT0}",
                      f"v_lshl_add_u32 v{dst}, v{hh}, 11, v{vT0}"]
        return L
    def addr_udma(g, P):
        if g.role == "F":
            P(f"v_lshrrev_b32 v{vT0}, 3, v{vLANE}")
            P(f"s_lshr_b32 s{sT2}, s{sW}, 1\ns_lshl_b32 s{sT2}, s{sT2}, 3")
            P(f"v_add_u32 v{vT0}, s{sT2}, v{vT0}")
            P(f"v_mul_u32_u24 v{vUD}, 3584, v{vT0}")
            P(f"v_bfe_u32 v{vT0}, v{vLANE}, 1, 2")
            P(f"v_bfe_u32 v{vT1}, v{vLANE}, 4, 1")
            P(f"s_and_b32 s{sT2}, s{sW}, 1\ns_lshl_b32 s{sT2}, s{sT2}, 1")
            P(f"v_add_u32 v{vT1}, s{sT2}, v{vT1}")
            P(f"v_xor_b32 v{vT0}, v{vT0}, v{vT1}")
            P(f"v_lshl_add_u32 v{vUD}, v{vT0}, 5, v{vUD}")
            P(f"v_and_b32 v{vT0}, 1, v{vLANE}")
            P(f"v_lshl_add_u32 v{vUD}, v{vT0}, 4, v{vUD}")
            P(f"s_mul_i32 s{sT2}, s{sHALF}, 7\ns_add_u32 s{sT2}, s{sT2}, s{sJJ}\ns_lshl_b32 s{sT2}, s{sT2}, 8")
            P(f"v_add_u32 v{vUD}, s{sT2}, v{vUD}")
            P(f"s_mul_i32 s{sUB}, s{sHK}, 1568\ns_add_u32 s{sUB}, s{sUB}, s{sWK}")
            P(f"s_cmp_ge_u32 s{sW}, 2\ns_cselect_b32 s{sUB}, 0x1000000, s{sUB}")
            P(f"s_mul_i32 s{sT3}, s{sHALF}, 7")
            for i in range(7):
                P(f"s_add_u32 s{sT2}, s{sJJ}, {i}\ns_cmp_ge_u32 s{sT2}, 7\ns_cselect_b32 s{sT4}, 7, 0\ns_sub_u32 s{sT2}, s{sT2}, s{sT4}\ns_add_u32 s{sP0+i}, s{sT2}, s{sT3}")
        else:
            P(f"v_lshrrev_b32 v{vT0}, 4, v{vLANE}")
            P(f"v_lshlrev_b32 v{vT1}, 2, v{vT0}")
            P(f"v_and_b32 v{vT2}, 15, v{vLANE}")
            P(f"v_xor_b32 v{vT1}, v{vT1}, v{vT2}")
            P(f"v_min_u32 v{vT1}, 13, v{vT1}")
            P(f"s_lshl_b32 s{sT2}, s{sW}, 2")
            P(f"v_add_u32 v{vT0}, s{sT2}, v{vT0}")
            P(f"v_mul_u32_u24 v{vUD}, 2688, v{vT0}")
            P(f"v_lshl_add_u32 v{vUD}, v{vT1}, 4, v{vUD}")
            P(f"s_mul_i32 s{sT2}, s{sHALF}, 448")
            P(f"v_add_u32 v{vUD}, s{sT2}, v{vUD}")
            P(f"s_mul_i32 s{sUB}, s{sHALF}, {8*1568}\ns_add_u32 s{sUB}, s{sUB}, s{sWK}")

    def wphi_frags(g, dst, areg, off):
        L = []
        for s in range(2):
            for rd in range(2):
                L.append((f"ds_read_b64_tr_b16 {v(dst+4*s+2*rd,2)}, v{areg} offset:{off + (16*s+8*rd)*56}", "wphi"))
        for r in range(8):
            L.append(f"v_mov_b32_dpp v{dst+r}, v{dst+r} row_shr:2 row_mask:0xa bank_mask:0x8")
        L.append(f"v_mov_b32 v{vT3}, 0")
        for r in (6, 7):
            L.append(f"v_mov_b32_dpp v{dst+r}, v{vT3} quad_perm:[0,1,2,3] row_mask:0xc bank_mask:0xf")
        return L
    def phi_logits(g, acc, pk, wf, D):
        L = [f"v_cvt_pk_bf16_f32 v{pk+i}, v{acc+2*i}, v{acc+2*i+1}" for i in range(8)]
        L.append(f"v_mfma_f32_32x32x16_bf16 {v(D,16)}, {v(wf,4)}, {v(pk,4)}, 0")
        L.append(f"v_mfma_f32_32x32x16_bf16 {v(D,16)}, {v(wf+4,4)}, {v(pk+4,4)}, {v(D,16)}")
        return L
    def minmax(g, D, t):
        L = []
        for op, d in (("max", t), ("min", t + 1)):
            L.append(f"v_{op}3_f32 v{d}, v{D}, v{D+1}, v{D+2}")
            for i in range(3, 13, 2): L.append(f"v_{op}3_f32 v{d}, v{d}, v{D+i}, v{D+i+1}")
            L.append(f"v_{op}_f32 v{d}, v{d}, v{D+13}")
        L += [f"v_mov_b32 v{t+2}, v{t}", f"v_mov_b32 v{t+3}, v{t+1}",
              f"v_permlane32_swap_b32 v{t}, v{t+2}", f"v_permlane32_swap_b32 v{t+1}, v{t+3}",
              f"v_max_f32 v{t}, v{t}, v{t+2}", f"v_min_f32 v{t+1}, v{t+1}, v{t+3}",
              f"v_mul_f32 v{t}, s{sL2E}, v{t}", f"v_mul_f32 v{t+1}, s{sL2E}, v{t+1}"]
        return L
    def exps(g, D, E, t):
        L = []
        for r in range(14):
            L.append(f"v_fma_f32 v{E+r}, v{D+r}, s{sL2E}, -v{t}")
            L.append(f"v_fma_f32 v{D+r}, -v{D+r}, s{sL2E}, v{t+1}")
            L.append(f"v_exp_f32 v{E+r}, v{E+r}")
            L.append(f"v_exp_f32 v{D+r}, v{D+r}")
        return L
    def gelu_tile(g, A, t, kappa_expr):
        L = []
        for hb in range(2):
            rs = range(4 * hb, 4 * hb + 4)
            for i, r in enumerate(rs): L.append(f"v_mul_f32 v{t+i}, v{A+r}, v{A+r}")
            for i, r in enumerate(rs): L.append(f"v_fma_f32 v{t+i}, v{t+i}, s{sC2}, v{vC1}")
            for i, r in enumerate(rs): L.append(f"v_mul_f32 v{t+i}, v{t+i}, v{A+r}")
            for i, r in enumerate(rs):
                L.append(f"v_exp_f32 v{t+i}, v{t+i}")
                L.append(f"v_mul_f32 v{A+8+r}, v{A+r}, v{A+8+r}")
            for i, r in enumerate(rs): L.append(f"v_add_f32 v{t+i}, 1.0, v{t+i}")
            for i, r in enumerate(rs): L.append(f"v_rcp_f32 v{t+i}, v{t+i}")
            for i, r in enumerate(rs): L.append(f"v_mul_f32 v{A+8+r}, v{A+8+r}, v{t+i}")
        for i in range(4): L.append(f"v_cvt_pk_bf16_f32 v{A+i}, v{A+8+2*i}, v{A+9+2*i}")
        L += kappa_expr
        L.append((f"buffer_store_dwordx4 {v(A,4)}, v{vL16}, {srd(SWS)}, s{sT0} offen sc1", "hst"))
        return L

    def stream(g, P, steps, bars, sides, tail_reads=True):
        N = len(steps)
        per = [[] for _ in range(N)]
        for (a, b, items) in sides:
            n = len(items)
            for k, it in enumerate(items): per[a + (k * (b - a)) // n].append(it)
        barpos = sorted(bars)
        def read(i):
            st = steps[i]; d = AF + 4 * (i % NAF)
            base = g.slot[st["grp"]] * SLOT + st["off"]
            o = st["areg"].off(P, base, st["rdoff"])
            P(f"ds_read_b64_tr_b16 {v(d,2)}, v{st['areg'].reg} offset:{o}")
            P(f"ds_read_b64_tr_b16 {v(d+2,2)}, v{st['areg'].reg} offset:{o+st['rdoff']}")
        def barrier(pos):
            nxt = [p for p in barpos if p > pos]
            hi = min(N, (nxt[0] + DEPTH) if nxt else N)
            need = {steps[i]["grp"] for i in range(max(0, pos + DEPTH), hi)} if pos > -DEPTH else {steps[i]["grp"] for i in range(0, hi)}
            need -= g.visible
            for k in need: assert k in g.issued, ("group not issued", k, pos)
            extra = bars[pos].get("wait", [])
            P.wait_tok(*(list(need) + extra))
            g.visible |= need | set(extra)
            P("s_barrier")
            if "stamp" in bars[pos]: g.stamp(P, bars[pos]["stamp"])
            g.emit_list(P, bars[pos].get("after", []))
        for pos in range(-DEPTH, N):
            if pos in bars: barrier(pos)
            if pos + DEPTH < N:
                assert steps[pos + DEPTH]["grp"] in g.visible, (steps[pos + DEPTH]["grp"], pos)
                if "pre" in steps[pos + DEPTH]: g.emit_list(P, steps[pos + DEPTH]["pre"])
                read(pos + DEPTH)
            if pos >= 0:
                st = steps[pos]; a = v(AF + 4 * (pos % NAF), 4); b = v(st["b"], 4)
                if st.get("swap"): a, b = b, a
                P(f"v_mfma_f32_32x32x16_bf16 {v(st['acc'],16)}, {a}, {b}, {'0' if st['first'] else v(st['acc'],16)}")
                for it in per[pos]:
                    if isinstance(it, list): g.emit_list(P, it)
                    else: g.emit_list(P, [it])
    def dma_item(g, key):
        assert key in g.slot, key
        def mark(P): g.issued.add(key)
        return g.dma(key, g.slot[key]) + [mark]

    def plan(g):
        D = DEPTH
        def at(step): return step - D
        bp = [at(0), 6, 12, at(20), at(28), at(36), at(48), at(60), at(72), at(84), at(100), at(116), at(128)]
        last = {("kv", k): 4 * k + 3 for k in range(7)}
        for u in range(2):
            for k in range(14): last[("u", u, k)] = 28 + 56 * u + 4 * k + 3
        slot = {("kv", k): 14 + k for k in range(6)}
        nmisc = 1 if g.role == "F" else 2
        queue = [("kv", 6)] + [("misc", k) for k in range(nmisc)] + [("u", 0, k) for k in range(14)] + [("u", 1, k) for k in range(14)]
        if g.role == "F": queue += [("w2", k) for k in range(18)]
        rate = g.cfg.rate
        free = []; occupied = dict(slot); issue = {}
        ends = bp[1:] + [140]
        for bi, pos in enumerate(bp):
            if bi == 1: free += [0, 1, 2, 3, 4, 5, 6]
            if bi == 2: free += [7, 8, 9, 10]
            if pos == g.cfg.stage_free: free += [11, 12, 13] + ([slot[("misc", 0)]] if g.role == "F" else [])
            for k in list(occupied):
                if k in last and last[k] <= pos - 1: free.append(occupied.pop(k))
            n = 0 if bi == 0 else max(1, int((ends[bi] - max(pos, 0)) * rate + 0.5))
            issue[pos] = []
            while n and free and queue:
                k = queue.pop(0); s = free.pop(0); slot[k] = s; occupied[k] = s; issue[pos].append(k); n -= 1
        for k in list(occupied):
            if k in last: free.append(occupied.pop(k))
        return bp, ends, slot, issue, queue, free

    def phase1(g, P, nh):
        role = g.role
        bp, ends, g.slot, issue, g.rest, g.free = g.plan()
        if role == "Q": assert g.slot[("misc", 1)] == g.slot[("misc", 0)] + 1
        g.issued = {("kv", k) for k in range(6)}; g.visible = set()
        LP = TMP + 12
        g.lane_parts(P, LP)
        vKA = TMP + 16
        g.addr_kv(P, nh, vKA, LP)
        g.addr_udma(P)
        g.emit_list(P, g.addr_unit(nh, LP))
        aK, a0, a1 = AddrReg(vKA), AddrReg(vA0), AddrReg(vA1)
        steps = []
        for s in range(28):
            steps.append(dict(grp=("kv", s // 4), areg=aK, off=(s % 4) * 2048, rdoff=512, b=XF + 4 * s, acc=ACC1, first=s == 0, swap=nh == 1))
        rdo = 512 if role == "F" else 1024
        for u in range(2):
            for s in range(28):
                for k in range(2):
                    steps.append(dict(grp=("u", u, s // 2), areg=(a0, a1)[k], off=(s % 2) * 4096, rdoff=rdo, b=XF + 4 * s,
                                      acc=(ACC0, ACC1)[u] + 16 * k, first=s == 0))
        XR = [AddrReg(g.vXR + q) for q in range(4)]
        def xread(s):
            def f(P):
                o = XR[s & 3].off(P, s * 4096)
                P(f"ds_read_b128 {v(XF+4*s,4)}, v{XR[s&3].reg} offset:{o}", tok=("x", s // 14))
            return f
        bars = {p: {} for p in bp}
        bars[bp[0]]["wait"] = [None]
        bars[bp[0]]["after"] = [xread(s) for s in range(3)]
        bars[bp[0]]["stamp"] = 4
        bars[bp[1]]["wait"] = [("x", 0)]
        bars[bp[2]]["wait"] = [("x", 1)]
        bars[bp[4]]["wait"] = [("misc", 0)] + ([("misc", 1)] if role == "Q" else [])
        bars[bp[4]]["stamp"] = 5
        bars[bp[9]]["stamp"] = 6
        sides = [(0, 5, [xread(s) for s in range(3, 14)]), (6, 11, [xread(s) for s in range(14, 28)])]
        for bi, pos in enumerate(bp):
            if issue[pos]: sides.append((max(pos, 0), ends[bi], [g.dma_item(k) for k in issue[pos]]))
        PHI, VST = 11 * SLOT, 13 * SLOT
        gi, c, rp, hh = LP, LP + 1, LP + 2, LP + 3
        e0, e1, e2, e3 = g.cfg.kv_sched
        vWP = TMP + 17
        wp_setup = [f"v_lshl_add_u32 v{vT0}, v{hh}, 2, v{rp}", f"v_mul_u32_u24 v{vT0}, 56, v{vT0}",
                    f"v_lshl_add_u32 v{vT1}, v{gi}, 2, v{c}", f"v_lshl_add_u32 v{vWP}, v{vT1}, 3, v{vT0}",
                    f"v_add_u32 v{vWP}, {g.slot[('misc',0)]*SLOT}, v{vWP}"]
        g.vWP = vWP
        if nh == 0:
            WF, PK, t = TMP + 20, TMP + 28, TMP + 36
            D, E = ACC1 + 16, ACC1
            L = list(wp_setup)
            if role == "Q":
                L += [f"s_and_b32 s{sT2}, s{sHK}, 7", f"s_mul_i32 s{sT2}, s{sT2}, 1568", f"v_add_u32 v{vT2}, s{sT2}, v{vWP}"]
                L += g.wphi_frags(WF, vT2, 0)
            else:
                L += g.wphi_frags(WF, vWP, 0)
            L += g.phi_logits(ACC1, PK, WF, D)
            L += [f"v_and_b32 v{vT0}, 31, v{vLANE}", f"v_lshlrev_b32 v{vT0}, 7, v{vT0}", f"v_lshl_add_u32 v{vT0}, v{hh}, 5, v{vT0}",
                  f"s_lshl_b32 s{sT2}, s{sRG}, 12", f"s_add_u32 s{sT2}, s{sT2}, {PHI}", f"v_add_u32 v{vT2}, s{sT2}, v{vT0}"]
            L += ["s_nop 0"] * 0
            L += g.minmax(D, t) + g.exps(D, E, t)
            for X, d in ((E, t), (D, t + 1)):
                L.append(f"v_add_f32 v{d}, v{X}, v{X+1}")
                for r in range(2, 14): L.append(f"v_add_f32 v{d}, v{d}, v{X+r}")
            L += [f"v_mov_b32 v{t+2}, v{t}", f"v_mov_b32 v{t+3}, v{t+1}",
                  f"v_permlane32_swap_b32 v{t}, v{t+2}", f"v_permlane32_swap_b32 v{t+1}, v{t+3}",
                  f"v_add_f32 v{t}, v{t}, v{t+2}", f"v_add_f32 v{t+1}, v{t+1}, v{t+3}",
                  f"v_rcp_f32 v{t}, v{t}", f"v_rcp_f32 v{t+1}, v{t+1}"]
            for sg, (X, d) in enumerate(((E, t), (D, t + 1))):
                for r in range(14): L.append(f"v_mul_f32 v{X+r}, v{X+r}, v{d}")
                for i in range(7): L.append(f"v_cvt_pk_bf16_f32 v{X+i}, v{X+2*i}, v{X+2*i+1}")
                L.append(f"v_mov_b32 v{X+7}, 0")
                L.append((f"ds_write_b128 v{vT2}, {v(X,4)} offset:{sg*64}", "stg"))
                L.append((f"ds_write_b128 v{vT2}, {v(X+4,4)} offset:{sg*64+16}", "stg"))
            sides.append((e0, e1, L))
            bars[e1].setdefault("wait", []).append("stg")
        else:
            L = list(wp_setup) if role == "Q" else []
            L += [f"v_cvt_pk_bf16_f32 v{ACC1+i}, v{ACC1+2*i}, v{ACC1+2*i+1}" for i in range(8)]
            L += [f"v_and_b32 v{vT0}, 31, v{vLANE}", f"v_mov_b32 v{vT1}, 0x3f803f80", f"v_cmp_lt_u32 vcc, 27, v{vT0}"]
            L += [f"v_cndmask_b32 v{ACC1+i}, v{ACC1+i}, v{vT1}, vcc" for i in range(8)]
            L += [f"v_subrev_u32 v{vT1}, 26, v{vT0}", f"v_cmp_gt_u32 vcc, 4, v{vT1}", f"v_xor_b32 v{vT1}, 6, v{vLANE}",
                  f"v_cndmask_b32 v{vT1}, v{vLANE}, v{vT1}, vcc", f"v_lshlrev_b32 v{vT1}, 4, v{vT1}",
                  f"s_lshl_b32 s{sT2}, s{sRG}, 11", f"s_add_u32 s{sT2}, s{sT2}, {VST}", f"v_add_u32 v{vT1}, s{sT2}, v{vT1}",
                  (f"ds_write_b128 v{vT1}, {v(ACC1,4)}", "stg"), (f"ds_write_b128 v{vT1}, {v(ACC1+4,4)} offset:1024", "stg")]
            vPA, vVA = TMP + 18, TMP + 19
            L += [f"v_lshl_add_u32 v{vT0}, v{hh}, 2, v{rp}", f"v_lshlrev_b32 v{vT0}, 7, v{vT0}",
                  f"v_and_b32 v{vT1}, 1, v{c}", f"v_lshl_add_u32 v{vT0}, v{vT1}, 5, v{vT0}",
                  f"v_lshrrev_b32 v{vT1}, 1, v{c}", f"v_lshl_add_u32 v{vT1}, v{gi}, 1, v{vT1}", f"v_lshl_add_u32 v{vT0}, v{vT1}, 3, v{vT0}",
                  f"s_and_b32 s{sT2}, s{sRG}, 1", f"s_lshl_b32 s{sT2}, s{sT2}, 6", f"s_add_u32 s{sT2}, s{sT2}, {PHI}",
                  f"v_add_u32 v{vPA}, s{sT2}, v{vT0}", f"v_add_u32 v{vVA}, {VST}, v{vL16}"]
            sides.append((e0, min(e0 + 10, e1), L))
            bars[e1].setdefault("wait", []).append("stg")
            D = ACC1 + 16; FA, FB = TMP + 20, ACC1
            R = []
            for tb in range(8):
                R.append([f"ds_read_b64_tr_b16 {v(FA+4*(tb%3),2)}, v{vPA} offset:{tb*2048}",
                          f"ds_read_b64_tr_b16 {v(FA+4*(tb%3)+2,2)}, v{vPA} offset:{tb*2048+1024}",
                          f"ds_read_b128 {v(FB+4*(tb%3),4)}, v{vVA} offset:{tb*1024}"])
            M = [f"v_mfma_f32_32x32x16_bf16 {v(D,16)}, {v(FA+4*(tb%3),4)}, {v(FB+4*(tb%3),4)}, {'0' if tb==0 else v(D,16)}" for tb in range(8)]
            L = [R[0], R[1]]
            for tb in range(8):
                L.append(([R[tb+2]] if tb + 2 < 8 else [[]])[0] + [M[tb]])
            sides.append((e1, e2, L))
            L = [f"s_lshl_b32 s{sT2}, s{sHK}, 1", f"s_add_u32 s{sT2}, s{sT2}, s{sRG}", f"s_lshl_b32 s{sT3}, s{sT2}, 4", f"s_add_u32 s{sT3}, s{sT3}, s{sR}",
                 f"s_lshl_b32 s{sT3}, s{sT3}, 12", f"s_add_u32 s{sT3}, s{sT3}, {WS_KVP}",
                 f"s_lshl_b32 s{sT2}, s{sT2}, 5", f"s_add_u32 s{sT2}, s{sT2}, s{sR}", f"s_lshl_b32 s{sT2}, s{sT2}, 2", f"s_add_u32 s{sT2}, s{sT2}, {WS_FK}",
                 f"s_cmp_ge_u32 s{sRG}, 2", f"s_cselect_b32 s{sT3}, 0x20000000, s{sT3}", f"s_cselect_b32 s{sT1}, 0x20000000, s{sT2}"]
            L = [L]
            for q in range(4): L.append((f"buffer_store_dwordx4 {v(D+4*q,4)}, v{vL16}, {srd(SWS)}, s{sT3} offen offset:{q*1024} sc1", "kvst"))
            sides.append((e2 + 2, e2 + 7, L))
            bars[e3].setdefault("wait", []).append("kvst")
            bars[e3].setdefault("after", []).append(lambda P: g.flag_store(P, f"s{sT1}"))
        return steps, bars, sides

    def hkappa(g, u, t):
        return [f"s_lshl_b32 s{sT0}, s{sP0}, 13", f"s_add_u32 s{sT0}, s{sT0}, s{sHFB}", f"s_add_u32 s{sT0}, s{sT0}, {(4*u+t)*1024}"]
    def fh_line(g, P, dst, u):
        P(f"s_lshl_b32 s{dst}, s{sR}, 1\ns_add_u32 s{dst}, s{dst}, s{sHALF}\ns_lshl_b32 s{dst}, s{dst}, 3\ns_add_u32 s{dst}, s{dst}, s{sW}\ns_lshl_b32 s{dst}, s{dst}, 8\ns_add_u32 s{dst}, s{dst}, {WS_FH + u*128}")

    def path_F(g, P, nh):
        g.role = "F"
        steps, bars, sides = g.phase1(P, nh)
        t = TMP + 20
        h0, h1, hf = g.cfg.h_sched
        L = g.gelu_tile(ACC0, t, [g.hkappa(0, 2 * nh)]) + g.gelu_tile(ACC0 + 16, t, [g.hkappa(0, 2 * nh + 1)])
        sides.append((h0, h1, L))
        sFH, sFW = 99, 100
        def fl0(P):
            g.fh_line(P, sFH, 0)
            P(f"s_lshl_b32 s{sFW}, s{sJJ}, 2\ns_add_u32 s{sFW}, s{sFW}, s{sFH}")
            g.flag_store(P, f"s{sFW}")
            P(f"v_min_u32 v{vFL}, 6, v{vLANE}\nv_lshlrev_b32 v{vFL}, 2, v{vFL}")
        bars[hf].setdefault("wait", []).append("hst")
        bars[hf].setdefault("after", []).append(fl0)
        g.stream(P, steps, bars, sides)
        g.stamp(P, 7)
        P("s_barrier")
        for k in g.rest:
            g.slot[k] = g.free.pop(0); g.emit_list(P, g.dma_item(k))
        g.poll_issue(P, vFL, f"s{sFH}")
        def hload(part, i, k):
            if part < 2:
                dst = XF + 4 * (14 * part + 2 * i + k)
                pre = [f"s_lshl_b32 s{sT1}, s{sP0+i}, 13", f"s_add_u32 s{sT1}, s{sT1}, s{sHFB}", f"s_add_u32 s{sT1}, s{sT1}, {(4*part+2*nh)*1024}"] if k == 0 else []
            else:
                dst = ACC1 + 4 * (2 * i + k)
                pre = [f"s_lshl_b32 s{sT1}, s{sHALF}, 14", f"s_add_u32 s{sT1}, s{sT1}, s{sHFB}", f"s_add_u32 s{sT1}, s{sT1}, {(112+4*i+2*nh)*1024}"] if k == 0 else []
            return pre + [f"buffer_load_dwordx4 {v(dst,4)}, v{vL16}, {srd(SWS)}, s{sT1} offen offset:{k*1024} sc1"]
        g.emit_list(P, [x for x in g.gelu_tile(ACC1, t, g.hkappa(1, 2 * nh))])
        g.poll_check(P, vFL, f"s{sFH}")
        g.stamp(P, 8)
        n0 = g.cfg.n_before
        for i in range(n0):
            for k in range(2): g.emit_list(P, hload(0, i, k))
        g.emit_list(P, [x for x in g.gelu_tile(ACC1 + 16, t, g.hkappa(1, 2 * nh + 1))])
        n1 = g.cfg.n_flag
        for i in range(n0, n1):
            for k in range(2): g.emit_list(P, hload(0, i, k))
        LP = TMP + 12; gi, c, rp, hh = LP, LP + 1, LP + 2, LP + 3
        P(f"v_and_b32 v{vT0}, 1, v{c}\nv_lshlrev_b32 v{vT0}, 2, v{vT0}\nv_lshl_add_u32 v{vT0}, v{gi}, 1, v{vT0}\nv_lshrrev_b32 v{vT1}, 1, v{c}\nv_add_u32 v{vT0}, v{vT0}, v{vT1}")
        P(f"v_lshlrev_b32 v{vT0}, 3, v{vT0}\nv_lshl_add_u32 v{vT0}, v{rp}, 7, v{vT0}\nv_lshl_add_u32 v{vT0}, v{hh}, 9, v{vT0}")
        P(f"v_lshrrev_b32 v{vT1}, 1, v{rp}\nv_lshl_add_u32 v{vA0}, v{vT1}, 6, v{vT0}\nv_xor_b32 v{vA1}, 64, v{vA0}")
        P.wait_tok("hst")
        P(f"s_add_u32 s{sFW}, s{sFW}, 128\ns_add_u32 s{sFH}, s{sFH}, 128")
        g.flag_store(P, f"s{sFW}")
        g.stamp(P, 9)
        for i in range(n1, 7):
            for k in range(2): g.emit_list(P, hload(0, i, k))
        vXO, XR_ = TMP + 16, TMP + 20
        P(f"v_and_b32 v{vT0}, 31, v{vLANE}\nv_mul_u32_u24 v{vT0}, 896, v{vT0}\nv_lshl_add_u32 v{vXO}, v{hh}, 5, v{vT0}")
        sXO = 101
        P(f"s_lshl_b32 s{sXO}, s{sR}, 2\ns_add_u32 s{sXO}, s{sXO}, s{sRG}\ns_mul_i32 s{sXO}, s{sXO}, {32*896}\ns_lshl_b32 s{sT2}, s{sJJ}, 7\ns_add_u32 s{sXO}, s{sXO}, s{sT2}\ns_add_u32 s{sXO}, s{sXO}, {64*nh}")
        P(f"s_lshr_b32 s{sT2}, s{sRG}, 1\ns_cmp_eq_u32 s{sT2}, s{sHALF}\ns_cselect_b32 s{sXO}, s{sXO}, 0x1000000")
        a0, a1 = AddrReg(vA0), AddrReg(vA1)
        steps = []
        for G in range(18):
            for k in range(2):
                b = XF + 4 * (2 * G + k) if G < 14 else ACC1 + 4 * (2 * (G - 14) + k)
                for n in range(2):
                    steps.append(dict(grp=("w2", G), areg=(a0, a1)[n], off=(2 * nh + k) * 2048, rdoff=1024, b=b, acc=ACC0 + 16 * n, first=(G == 0 and k == 0)))
        bars = {-DEPTH: {}, 40: {}}
        p1i, p1c, p2i, p2c = g.cfg.p2_sched
        def chk1(P):
            g.poll_check(P, vFL, f"s{sFH}"); g.stamp(P, 10)
            for i in range(7):
                for k in range(2): g.emit_list(P, hload(1, i, k))
            P(f"v_mov_b32 v{vFL}, 28")
        def chk2(P):
            g.poll_check(P, vFL, f"s{sFH}"); g.stamp(P, 11)
            for i in range(4):
                for k in range(2): g.emit_list(P, hload(2, i, k))
            for k in range(2): P(f"buffer_load_dwordx4 {v(XR_+4*k,4)}, v{vXO}, {srd(SX)}, s{sXO} offen offset:{16*k}")
        sides = [(p1i, p1i + 1, [lambda P: g.poll_issue(P, vFL, f"s{sFH}")]), (p1c, p1c + 1, [chk1]),
                 (p2i, p2i + 1, [lambda P: g.poll_issue(P, vFL, f"s{sFH}")]), (p2c, p2c + 1, [chk2])]
        g.stream(P, steps, bars, sides)
        g.stamp(P, 12)
        keep, send = ACC0 + 16 * nh, ACC0 + 16 * (1 - nh)
        P(f"s_mov_b32 s{sT2}, {g.slot[('w2',0)]*SLOT}")
        for q in range(1, 4):
            P(f"s_cmp_eq_u32 s{sRG}, {q}\ns_cselect_b32 s{sT2}, {g.slot[('w2',q)]*SLOT}, s{sT2}")
        P(f"v_add_u32 v{vT2}, s{sT2}, v{vL16}")
        for q in range(4): P(f"ds_write_b128 v{vT2}, {v(send+4*q,4)} offset:{nh*4096+q*1024}")
        P.wait_all(vm=False)
        P("s_barrier")
        for q in range(4): P(f"ds_read_b128 {v(send+4*q,4)}, v{vT2} offset:{(1-nh)*4096+q*1024}")
        P(f"s_mul_i32 s{sT2}, s{sR}, 7\ns_add_u32 s{sT2}, s{sT2}, s{sJJ}\ns_lshl_b32 s{sT2}, s{sT2}, 2\ns_add_u32 s{sT2}, s{sT2}, s{sRG}\ns_lshl_b32 s{sT2}, s{sT2}, 1\ns_add_u32 s{sT2}, s{sT2}, {nh}")
        P(f"s_lshl_b32 s{sT3}, s{sT2}, 12\ns_add_u32 s{sT3}, s{sT3}, {WS_XCH}\ns_lshl_b32 s{sT2}, s{sT2}, 7\ns_add_u32 s{sT2}, s{sT2}, {WS_FX}")
        for r in range(16): P(f"v_add_f32 v{keep+r}, v{keep+r}, v{send+r}")
        recv = g.lab("recv")
        P(f"s_cmp_lt_u32 s{sXO}, 0x1000000\ns_cbranch_scc1 {recv}")
        R = P.fork()
        for q in range(4): P(f"buffer_store_dwordx4 {v(keep+4*q,4)}, v{vL16}, {srd(SWS)}, s{sT3} offen offset:{q*1024} sc1")
        P.wait_all()
        g.flag_store(P, f"s{sT2}")
        g.stamp(P, 13)
        g.finish(P)
        P = R; P.label(recv)
        P(f"v_mov_b32 v{vFL}, 0")
        g.poll_issue(P, vFL, f"s{sT2}")
        for k in range(2):
            for q in range(4):
                P(f"v_lshlrev_b32 v{vT0}, 16, v{XR_+4*k+q}\nv_and_b32 v{vT1}, s{sMASK}, v{XR_+4*k+q}")
                P(f"v_add_f32 v{keep+8*k+2*q}, v{keep+8*k+2*q}, v{vT0}\nv_add_f32 v{keep+8*k+2*q+1}, v{keep+8*k+2*q+1}, v{vT1}")
        g.poll_check(P, vFL, f"s{sT2}")
        g.stamp(P, 13)
        for q in range(4): P(f"buffer_load_dwordx4 {v(send+4*q,4)}, v{vL16}, {srd(SWS)}, s{sT3} offen offset:{q*1024} sc1")
        for r in range(16): P(f"v_add_f32 v{keep+r}, v{keep+r}, v{send+r}")
        for i in range(8): P(f"v_cvt_pk_bf16_f32 v{keep+i}, v{keep+2*i}, v{keep+2*i+1}")
        for k in range(2): P(f"buffer_store_dwordx4 {v(keep+4*k,4)}, v{vXO}, {srd(SOUT)}, s{sXO} offen offset:{16*k}")
        if nh == 0:
            sk = g.lab("nobump")
            P(f"s_or_b32 s{sT2}, s2, s{sW}\ns_cmp_lg_u32 s{sT2}, 0\ns_cbranch_scc1 {sk}")
            P(f"s_add_u32 s{sTAG}, s{sEP}, 1")
            g.flag_store(P, "0")
            P.label(sk)
        g.finish(P)

    def path_Q(g, P, nh):
        g.role = "Q"
        steps, bars, sides = g.phase1(P, nh)
        WF, PK, t = TMP + 20, TMP + 28, TMP + 36
        def epiA(acc, hl, dst):
            L = g.wphi_frags(WF, g.vWP, hl * 1568)
            L += g.phi_logits(acc, PK, WF, acc)
            E = WF
            L += g.minmax(acc, t) + g.exps(acc, E, t)
            for i in range(7): L.append(f"v_cvt_pk_bf16_f32 v{E+i}, v{E+2*i}, v{E+2*i+1}")
            for i in range(7): L.append(f"v_cvt_pk_bf16_f32 v{acc+i}, v{acc+2*i}, v{acc+2*i+1}")
            for i in range(7): L.append(f"v_mov_b32 v{acc+8+i}, v{E+i}")
            L += [f"v_mov_b32 v{acc+7}, 0", f"v_mov_b32 v{acc+15}, 0"]
            return L
        q0, q1 = g.cfg.q_sched
        sides.append((q0, q1, epiA(ACC0, nh, 0) + epiA(ACC0 + 16, nh + 2, 0)))
        g.stream(P, steps, bars, sides)
        g.stamp(P, 7)
        P("s_barrier")
        if nh == 0:
            P(f"v_min_u32 v{vFL}, 15, v{vLANE}\nv_lshlrev_b32 v{vFL}, 2, v{vFL}")
            P(f"s_lshl_b32 s{sT2}, s{sR}, 1\ns_add_u32 s{sT2}, s{sT2}, s{sHALF}\ns_lshl_b32 s{sT3}, s{sT2}, 7\ns_add_u32 s{sT3}, s{sT3}, {WS_FK}")
            g.poll_issue(P, vFL, f"s{sT3}"); g.poll_check(P, vFL, f"s{sT3}")
            P(f"s_lshl_b32 s{sT3}, s{sT2}, 16\ns_add_u32 s{sT3}, s{sT3}, s{sWK}\ns_add_u32 s{sT3}, s{sT3}, {WS_KVP}")
            for r in range(16):
                P(f"buffer_load_dwordx4 {v(XF+4*r,4)}, v{vL16}, {srd(SWS)}, s{sT3} offen sc1")
                P(f"s_add_u32 s{sT3}, s{sT3}, 4096")
            for r in range(1, 16):
                for q in range(4): P(f"v_add_f32 v{XF+q}, v{XF+q}, v{XF+4*r+q}")
            P(f"v_cvt_pk_bf16_f32 v{XF}, v{XF}, v{XF+1}\nv_cvt_pk_bf16_f32 v{XF+1}, v{XF+2}, v{XF+3}")
            P(f"v_and_b32 v{vT0}, 27, v{vLANE}\nv_mov_b32 v{vT1}, 0x3f803f80\nv_cmp_eq_u32 vcc, 27, v{vT0}")
            P(f"v_cndmask_b32 v{XF}, v{XF}, v{vT1}, vcc\nv_cndmask_b32 v{XF+1}, v{XF+1}, v{vT1}, vcc")
            P(f"v_lshlrev_b32 v{vT2}, 3, v{vLANE}")
            P(f"s_lshl_b32 s{sT2}, s{sT2}, 2\ns_add_u32 s{sT2}, s{sT2}, s{sW}\ns_lshl_b32 s{sT3}, s{sT2}, 9\ns_add_u32 s{sT3}, s{sT3}, {WS_KVF}")
            P(f"buffer_store_dwordx2 {v(XF,2)}, v{vT2}, {srd(SWS)}, s{sT3} offen sc1")
            P(f"s_lshl_b32 s{sT2}, s{sT2}, 2\ns_add_u32 s{sT2}, s{sT2}, {WS_FF}")
            P.wait_all(lg=False)
            g.flag_store(P, f"s{sT2}")
        g.stamp(P, 8)
        g.emit_list(P, epiA(ACC1, 4 + nh, 0) + epiA(ACC1 + 16, 4 + nh + 2, 0))
        g.stamp(P, 9)
        P(f"v_lshlrev_b32 v{vFL}, 2, v{vLANE}")
        P(f"s_lshl_b32 s{sT3}, s{sHALF}, 8\ns_add_u32 s{sT3}, s{sT3}, {WS_FF}")
        g.poll_issue(P, vFL, f"s{sT3}"); g.poll_check(P, vFL, f"s{sT3}")
        g.stamp(P, 10)
        P(f"s_lshl_b32 s{sT4}, s{sHALF}, 15\ns_add_u32 s{sT4}, s{sT4}, s{sWK}\ns_add_u32 s{sT4}, s{sT4}, {WS_KVF}")
        base = [s for s in range(16) if all((s + k) in g.free for k in range(4))][0]
        for k in range(4): g.emit_list(P, g.dma(("kvf", k), base + k))
        P(f"v_lshlrev_b32 v{vT2}, 3, v{vLANE}\nv_add_u32 v{vT2}, {base*SLOT}, v{vT2}")
        P.wait_all(lg=False)
        P("s_barrier")
        g.stamp(P, 11)
        KA = XF; DP = XF + 64
        heads = [(ACC0, nh), (ACC0 + 16, nh + 2), (ACC1, 4 + nh), (ACC1 + 16, 6 + nh)]
        for i, (acc, hl) in enumerate(heads):
            for q in range(8): P(f"ds_read_b64 {v(KA+16*i+2*q,2)}, v{vT2} offset:{hl*4096+q*512}")
        for i, (acc, hl) in enumerate(heads):
            Dp, Dm = (DP, DP + 16) if i % 2 == 0 else (TMP, TMP + 16)
            Dp, Dm = (DP, DP + 16) if i % 2 == 0 else (AF, AF + 16)
            for s in range(2): P(f"v_mfma_f32_32x32x16_bf16 {v(Dp,16)}, {v(KA+16*i+4*s,4)}, {v(acc+8+4*s,4)}, {'0' if s==0 else v(Dp,16)}")
            for s in range(2): P(f"v_mfma_f32_32x32x16_bf16 {v(Dm,16)}, {v(KA+16*i+8+4*s,4)}, {v(acc+4*s,4)}, {'0' if s==0 else v(Dm,16)}")
            P(f"s_lshl_b32 s{sT0}, s{sHALF}, 14\ns_add_u32 s{sT0}, s{sT0}, s{sHFB}\ns_add_u32 s{sT0}, s{sT0}, {(112+2*hl)*1024}")
            P(f"v_rcp_f32 v{vT0}, v{Dp+15}\nv_rcp_f32 v{vT1}, v{Dm+15}")
            P(f"v_fmaak_f32 v{vT3}, v{Dp+14}, v{vT0}, {hex(f2u(1e-6))}")
            P(f"v_fmac_f32 v{vT3}, v{Dm+14}, v{vT1}")
            P(f"v_rcp_f32 v{vT3}, v{vT3}")
            P(f"v_mul_f32 v{vT0}, v{vT0}, v{vT3}\nv_mul_f32 v{vT1}, v{vT1}, v{vT3}")
            for r in range(14): P(f"v_mul_f32 v{Dp+r}, v{Dp+r}, v{vT0}")
            for r in range(14): P(f"v_fmac_f32 v{Dp+r}, v{Dm+r}, v{vT1}")
            for k in range(7): P(f"v_cvt_pk_bf16_f32 v{acc+k}, v{Dp+2*k}, v{Dp+2*k+1}")
            for s in range(2): P(f"buffer_store_dwordx4 {v(acc+4*s,4)}, v{vL16}, {srd(SWS)}, s{sT0} offen offset:{s*1024} sc1")
        g.fh_line(P, sT2, 1)
        P(f"s_add_u32 s{sT2}, s{sT2}, 28")
        P.wait_all()
        g.flag_store(P, f"s{sT2}")
        g.stamp(P, 12)
        g.finish(P)

    def finish(g, P):
        if g.cfg.stamps:
            g.stamp(P, 14); g.stamp(P, 15, real=True)
            P("s_branch L_stamps")
        else:
            P("s_endpgm")

    def build(g):
        O = g.out
        O += [f"; @launch grid=(256,1,1) block=(512,1,1) lds=163840",
              '.amdgcn_target "amdgcn-amd-amdhsa--gfx950"', ".text", f".globl {NAME}_kernel", ".p2align 8",
              f".type {NAME}_kernel,@function", f"{NAME}_kernel:"]
        P = g.prologue()
        stats = {}
        A = P.fork(); g.path_F(A, 0); stats["F0"] = A
        O.append(".p2align 3"); A = P.fork(); A.label("L_F1"); g.path_F(A, 1); stats["F1"] = A
        O.append(".p2align 3"); B = P.fork(); B.label("L_Q"); B(f"s_cmp_ge_u32 s{sW}, 4\ns_cbranch_scc1 L_Q1")
        A = B.fork(); g.path_Q(A, 0); stats["Q0"] = A
        O.append(".p2align 3"); A = B.fork(); A.label("L_Q1"); g.path_Q(A, 1); stats["Q1"] = A
        O += g.slow
        if g.cfg.stamps:
            O += ["L_stamps:", "  s_waitcnt lgkmcnt(0)", "  s_lshl_b32 s47, s2, 3", f"  s_add_u32 s47, s47, s{sW}", "  s_lshl_b32 s47, s47, 7",
                  f"  s_add_u32 s47, s47, {WS_ST}", "  v_mov_b32 v2, 0", "  s_mov_b64 exec, 1"]
            for i in range(16):
                O += [f"  v_mov_b32 v4, s{sST+2*i}", f"  v_mov_b32 v5, s{sST+2*i+1}", f"  buffer_store_dwordx2 v[4:5], v2, {srd(SWS)}, s47 offen offset:{8*i}", "  s_nop 1"]
        O += ["L_end:", "  s_endpgm", "L_code_end:",
              '.section .rodata,"a"', ".p2align 6", f".amdhsa_kernel {NAME}_kernel",
              "  .amdhsa_next_free_vgpr 256", "  .amdhsa_next_free_sgpr 102", "  .amdhsa_accum_offset 256",
              "  .amdhsa_group_segment_fixed_size 0", "  .amdhsa_kernarg_size 88", "  .amdhsa_user_sgpr_count 2",
              "  .amdhsa_user_sgpr_kernarg_segment_ptr 1", "  .amdhsa_system_sgpr_workgroup_id_x 1", ".end_amdhsa_kernel"]
        return "\n".join(O) + "\n", stats

DEFAULT = dict(stamps=False, codepf=True, rate=0.42, stage_free=80, kv_sched=(29, 56, 66, 80), h_sched=(85, 112, 124),
               n_before=2, n_flag=5, p2_sched=(8, 20, 34, 46), q_sched=(85, 138))
def generate(path, **kw):
    c = dict(DEFAULT); c.update(kw)
    g = Gen(Cfg(**c))
    txt, stats = g.build()
    open(path, "w").write(txt)
    return stats
if __name__ == "__main__":
    st = generate(sys.argv[1], stamps=len(sys.argv) > 2)
    for k, p in st.items(): print(k, p.count, "nops", p.nnop, "waits", p.nwait)
```
